```python
import torch

def _softmax(x, axis=-1):
    return torch.softmax(x, dim=axis)
def _gelu(x):
    return torch.nn.functional.gelu(x, approximate="tanh")
def _silu(x):
    return torch.nn.functional.silu(x)
def _sigmoid(x):
    return torch.sigmoid(x)
def _layernorm(x, axis=-1, eps=1e-5):
    m = x.mean(dim=axis, keepdim=True)
    v = x.var(dim=axis, keepdim=True, unbiased=False)
    return (x - m) / torch.sqrt(v + eps)
def _scatter_add(tgt, idx, src, axis=0):
    return tgt.clone().index_add_(axis, idx, src)
def _segment_sum(src, seg, n):
    out = torch.zeros((n,) + src.shape[1:], dtype=src.dtype)
    return out.index_add_(0, seg, src)
def _pad(x, pw):
    flat = tuple(v for pair in reversed(pw) for v in pair)
    return torch.nn.functional.pad(x, flat)

kernel_name = 'interleave_layers__sliding_block__glu_gated_geglu__prompt'

def setup_inputs():

    _w = (lambda a: (lambda t: t.to(torch.bfloat16) if t.is_floating_point() else t)(torch.as_tensor(a)))
    def _A_setup():
        B, S, D = 1, 2048, 640
        return {
            "x": _w((lambda *s: torch.randn(*s, dtype=torch.bfloat16) * 0.05)(B, S, D)),
            "wqkv": _w((lambda *s: torch.randn(*s, dtype=torch.bfloat16) * 0.05)(D, 3 * D)),
            "wo": _w((lambda *s: torch.randn(*s, dtype=torch.bfloat16) * 0.05)(D, D)),
        }
    _A_in = _A_setup()

    def _B_setup():
        B, S, Dm, Df = 1, 2048, 640, 1536
        return {
            "x": _w((lambda *s: torch.randn(*s, dtype=torch.bfloat16) * 0.05)(B, S, Dm)),
            "w_gate": _w((lambda *s: torch.randn(*s, dtype=torch.bfloat16) * 0.8)(Dm, Df) * (Dm ** -0.5)),
            "w_up": _w((lambda *s: torch.randn(*s, dtype=torch.bfloat16) * 0.8)(Dm, Df) * (Dm ** -0.5)),
            "w_down": _w((lambda *s: torch.randn(*s, dtype=torch.bfloat16) * 0.8)(Df, Dm) * (Df ** -0.5)),
        }
    _B_in = _B_setup()

    return {
        "A_x": _A_in["x"],
        "A_wqkv": _A_in["wqkv"],
        "A_wo": _A_in["wo"],
        "B_x": _B_in["x"],
        "B_w_gate": _B_in["w_gate"],
        "B_w_up": _B_in["w_up"],
        "B_w_down": _B_in["w_down"],
    }

def reference(A_x, A_wqkv, A_wo, B_x, B_w_gate, B_w_up, B_w_down):
    def _A_ref(x, wqkv, wo):
        B, S, D = x.shape
        H = 32; Dh = D // H; W = 256
        qkv = (lambda x, *d: x.permute(*d))((x @ wqkv).reshape(B, S, 3, H, Dh), 2, 0, 3, 1, 4)
        q, k, v = qkv[0], qkv[1], qkv[2]
        scores = torch.einsum("bhqd,bhkd->bhqk", q, k) * (Dh ** -0.5)
        idx = torch.arange(S)
        mask = (idx[:, None] - idx[None, :] >= 0) & (idx[:, None] - idx[None, :] < W)
        scores = torch.where(mask[None, None], scores, -1e9)
        p = _softmax(scores, axis=-1)
        o = torch.einsum("bhqk,bhkd->bhqd", p, v)
        return (lambda x, *d: x.permute(*d))(o, 0, 2, 1, 3).reshape(B, S, D) @ wo

    def _B_ref(x, w_gate, w_up, w_down):
        g = torch.einsum("bsd,df->bsf", x, w_gate)
        u = torch.einsum("bsd,df->bsf", x, w_up)
        h = _gelu(g) * u
        return torch.einsum("bsf,fd->bsd", h, w_down)

    x = A_x
    x = x + _A_ref(_layernorm(x, axis=-1), A_wqkv, A_wo)
    x = x + _B_ref(_layernorm(x, axis=-1), B_w_gate, B_w_up, B_w_down)
    x = x + _A_ref(_layernorm(x, axis=-1), A_wqkv, A_wo)
    x = x + _B_ref(_layernorm(x, axis=-1), B_w_gate, B_w_up, B_w_down)
    return x
```

```python
import re

REG_RE = re.compile(r'(?<![\w.])([vas])(?:\[(\d+):(\d+)\]|(\d+))(?![\w])')
TRANS = ("v_exp_f32", "v_log_f32", "v_rcp_f32", "v_rsq_f32", "v_sqrt_f32", "v_sin_f32", "v_cos_f32")

def regs_of(opnd):
    out = []
    for m in REG_RE.finditer(opnd):
        k = m.group(1)
        if m.group(4) is not None: out.append((k, int(m.group(4))))
        else: out += [(k, i) for i in range(int(m.group(2)), int(m.group(3)) + 1)]
    if re.search(r'\bvcc\b', opnd): out.append(('x', 'vcc'))
    if re.search(r'\bexec\b', opnd): out.append(('x', 'exec'))
    if re.search(r'\bm0\b', opnd): out.append(('x', 'm0'))
    return out

def split_ops(s):
    ops, depth, cur = [], 0, ""
    for ch in s:
        if ch in "[(": depth += 1
        if ch in "])": depth -= 1
        if ch == "," and depth == 0: ops.append(cur.strip()); cur = ""
        else: cur += ch
    if cur.strip(): ops.append(cur.strip())
    return ops

class I:
    __slots__ = ("text", "op", "cls", "dst", "src", "srcA", "srcC", "passes", "tok", "maybe", "wide", "arg", "cost")
    def __init__(self, text, maybe=False):
        self.text = text; self.maybe = maybe; self.tok = None; self.arg = None
        t = text.split(";")[0].strip()
        sp = t.split(None, 1)
        self.op = op = sp[0]
        ops = split_ops(sp[1]) if len(sp) > 1 else []
        R = [regs_of(o) for o in ops]
        flat = lambda L: [r for x in L for r in x]
        self.dst, self.src, self.srcA, self.srcC, self.passes, self.wide = [], [], [], [], 0, []
        self.cost = 4
        if op.endswith(":"):
            self.cls = "label"; self.cost = 0
        elif op.startswith("v_mfma"):
            self.cls = "mfma"; self.dst = R[0]; self.srcA = R[1] + R[2]; self.srcC = R[3]; self.src = self.srcA + self.srcC
            self.passes = 8 if "32x32" in op else 4; self.cost = 8
        elif op.startswith("buffer_load") or op.startswith("global_load"):
            if re.search(r'\blds\b', t) or "_lds_" in op:
                self.cls = "dma"; self.src = flat(R) + [('x', 'm0')]
            else:
                self.cls = "vload"; self.dst = R[0]; self.src = flat(R[1:])
            self.cost = 8
        elif op.startswith("buffer_store") or op.startswith("global_store"):
            self.cls = "vstore"; self.src = flat(R); self.cost = 8
            if "x4" in op or "x3" in op: self.wide = R[0] if op.startswith("buffer") else R[1]
        elif "atomic" in op and not op.startswith("s_"):
            self.cls = "vstore"; self.src = flat(R); self.cost = 8
            if re.search(r'\bsc0\b', t):
                self.cls = "vload"; self.dst = R[0]
        elif op.startswith("ds_read"):
            self.cls = "lread"; self.dst = R[0]; self.src = flat(R[1:])
        elif op.startswith("ds_write"):
            self.cls = "lwrite"; self.src = flat(R); self.cost = 20 if "128" in op else 8
        elif op.startswith("s_load") or op in ("s_memtime", "s_memrealtime"):
            self.cls = "smem"; self.dst = R[0]; self.src = flat(R[1:])
        elif op.startswith("v_"):
            self.cls = "valu"
            if op.startswith("v_cmp"): self.dst = R[0]; self.src = flat(R[1:])
            elif op.startswith("v_permlane") or op.startswith("v_swap"): self.dst = R[0] + R[1]; self.src = R[0] + R[1]; self.cost = 8
            elif "_co_" in op: self.dst = R[0] + R[1]; self.src = flat(R[2:])
            elif op.startswith("v_fmac") or op.startswith("v_dot2c") or op.startswith("v_writelane"): self.dst = R[0]; self.src = flat(R)
            elif op == "v_nop": pass
            else: self.dst = R[0]; self.src = flat(R[1:])
            if op.split("_e")[0] in TRANS or op in TRANS: self.cost = 8
        elif op.startswith("s_"):
            self.cls = "salu"
            if op in ("s_nop",): self.cls = "nop"; self.arg = int(ops[0], 0)
            elif op == "s_waitcnt": self.cls = "wait"
            elif op == "s_barrier": self.cls = "barrier"
            elif op.startswith("s_cbranch") or op in ("s_branch", "s_endpgm", "s_setpc_b64"): self.cls = "branch"; self.src = flat(R)
            elif op.startswith("s_cmp") or op in ("s_sleep", "s_setprio", "s_bitcmp1_b32", "s_bitcmp0_b32"): self.src = flat(R)
            else: self.dst = R[0]; self.src = flat(R[1:])
        elif op.startswith("."):
            self.cls = "dir"; self.cost = 0
        elif op.startswith("@"):
            self.cls = "pseudo"; self.cost = 4
        else:
            raise ValueError("unknown instr: " + text)
    def is_trans(self): return self.op.split("_e")[0] in TRANS or self.op in TRANS
    def __repr__(self): return self.text

def W(*toks):
    p = I("@wait"); p.arg = [t for t in toks if t is not None]; return p
def WR(regs):
    p = I("@waitreg"); p.arg = regs_of(regs); return p
def RESET():
    return I("@fence")

VM = ("vload", "vstore", "dma")
LG = ("lread", "lwrite")

def finalize(stream, verbose=False):
    out = []
    vm, lg = [], []
    vm_done = lg_done = 0
    pend = {}
    smem_pend = []
    idx = {}
    stats = {"nop": 0, "wait": 0}
    def emit_wait(vm_need, lg_need, smem=False):
        nonlocal vm_done, lg_done, smem_pend
        parts = []
        if vm_need is not None and vm_need >= vm_done:
            n = sum(1 for x in vm[vm_need + 1:] if not x.maybe)
            parts.append(f"vmcnt({min(n, 63)})"); vm_done = vm_need + 1
        if smem or (lg_need is not None and lg_need >= lg_done and smem_pend):
            parts.append("lgkmcnt(0)"); lg_done = len(lg); smem_pend = []
        elif lg_need is not None and lg_need >= lg_done:
            n = sum(1 for x in lg[lg_need + 1:] if not x.maybe)
            parts.append(f"lgkmcnt({min(n, 15)})"); lg_done = lg_need + 1
        if parts:
            out.append(I("s_waitcnt " + " ".join(parts))); stats["wait"] += 1
    def need_for(objs):
        a = b = None; s = False
        for x in objs:
            if x.cls in VM: a = max(a, idx[id(x)]) if a is not None else idx[id(x)]
            elif x.cls in LG: b = max(b, idx[id(x)]) if b is not None else idx[id(x)]
            elif x.cls == "smem": s = s or (x in smem_pend)
        return a, b, s
    def states_between(k):
        n = 0
        for x in out[k + 1:]:
            if x.cls == "nop": n += x.arg + 1
            elif x.cls in ("label", "dir"): pass
            else: n += 1
        return n
    def hazard(c):
        need = 0
        k = len(out) - 1; dist = 0
        cs, cd = set(c.src), set(c.dst)
        while k >= 0 and dist < 20:
            p = out[k]
            req = 0
            pd = set(p.dst)
            if p.cls == "valu":
                vg = {r for r in pd if r[0] in "va"}; sg = {r for r in pd if r[0] in "sx"}
                if c.cls == "mfma" and vg & cs: req = max(req, 2)
                if c.cls == "valu":
                    if c.op.startswith("v_permlane") and vg & cs: req = max(req, 2)
                    if (c.op.startswith("v_readlane") or c.op.startswith("v_readfirstlane")) and vg & cs: req = max(req, 1)
                    if "dpp" in c.text and vg & cs: req = max(req, 2)
                    if sg & cs: req = max(req, 4 if "lane" in c.op else 2)
                    if p.is_trans() and vg & cs: req = max(req, 1)
                    if p.op.startswith("v_dot2") and p.op != c.op and vg & (cs | cd): req = max(req, 3)
                    if p.op.startswith("v_dot2") and p.op == c.op and vg & (cs - cd): req = max(req, 3)
                if p.op.startswith("v_dot2") and c.cls != "valu" and vg & (cs | cd): req = max(req, 3)
                if p.is_trans() and c.cls in VM + LG + ("mfma",) and vg & cs: req = max(req, 2)
                if c.cls in VM and sg & cs: req = max(req, 5)
                if c.cls in ("salu", "branch", "smem") and sg & cs: req = max(req, 1)
                if c.cls == "branch" and "vcc" in c.op and ('x', 'vcc') in sg: req = max(req, 1)
            elif p.cls == "mfma":
                big = 12 if p.passes == 8 else 8
                if c.cls == "mfma":
                    if pd & set(c.srcA): req = max(req, big)
                    if pd & set(c.srcC):
                        if not (p.dst == c.srcC and p.passes == c.passes): req = max(req, big - 2)
                    elif pd & cd: req = max(req, big - 2)
                elif pd & (cs | cd): req = max(req, big)
                if c.cls in ("valu", "vload", "lread") and set(p.srcC) & cd: req = max(req, 7 if p.passes == 8 else 3)
            elif p.cls == "salu":
                if ('x', 'm0') in pd and c.cls == "dma": req = max(req, 1)
            elif p.cls == "vstore":
                if p.wide and set(p.wide) & cd: req = max(req, 2)
            if req > dist: need = max(need, req - dist)
            if p.cls == "nop": dist += p.arg + 1
            elif p.cls in ("label", "dir"): pass
            else: dist += 1
            k -= 1
        return need
    for c in stream:
        if c.cls == "pseudo":
            if c.op == "@wait":
                a, b, s = need_for(c.arg); emit_wait(a, b, s)
            elif c.op == "@waitreg":
                a, b, s = need_for({id(pend[r]): pend[r] for r in c.arg if r in pend}.values()); emit_wait(a, b, s)
            elif c.op == "@fence":
                out.append(I("s_nop 11")); stats["nop"] += 1
            continue
        touched = [pend[r] for r in c.src + c.dst if r in pend]
        if touched:
            a, b, s = need_for(touched); emit_wait(a, b, s)
            for r in c.src + c.dst: pend.pop(r, None)
        if c.cls == "wait":
            m = re.search(r'vmcnt\((\d+)\)', c.text)
            if m and int(m.group(1)) == 0: vm_done = len(vm)
            m = re.search(r'lgkmcnt\((\d+)\)', c.text)
            if m and int(m.group(1)) == 0: lg_done = len(lg); smem_pend = []
        n = hazard(c)
        if n > 0:
            if verbose: print(f"nop {n} before {c.text}")
            out.append(I(f"s_nop {n - 1}")); stats["nop"] += 1
        out.append(c)
        if c.cls in VM: idx[id(c)] = len(vm); vm.append(c)
        elif c.cls in LG: idx[id(c)] = len(lg); lg.append(c)
        elif c.cls == "smem": smem_pend.append(c)
        if c.cls in ("vload", "lread", "smem"):
            for r in c.dst: pend[r] = c
    return out, stats

class S(list):
    def __call__(self, text, maybe=False):
        last = None
        for line in text.split("\n"):
            line = line.strip()
            if not line or line.startswith(";"): continue
            last = I(line, maybe); self.append(last)
        return last
    def add(self, x):
        if isinstance(x, I): self.append(x)
        else: self.extend(x)
        return x

class Gp(list):
    def __init__(self, ins, start=0, after=(), dead=None):
        super().__init__(ins); self.start = start; self.after = list(after); self.dead = dead

def grp(ins, **kw):
    return [Gp([i], **kw) for i in ins]

def weave(mains, streams, budget):
    out = S()
    pos = [0] * len(streams)
    placed = {}
    nxt = [st[0] for st in streams]
    for g, m in enumerate(mains):
        used = 0; seen = False; free = True
        for x in m:
            out.append(x)
            if seen:
                if free and x.cls in ("pseudo", "salu", "barrier"): free = False
                else: used += x.cost
            if x.cls == "mfma": seen = True
        mem, alu = [], []
        alu_used = set()
        progress = True
        while progress:
            progress = False
            for si, st in enumerate(streams):
                groups = st[1]
                if pos[si] >= len(groups) or g < int(nxt[si]): continue
                gp = groups[pos[si]]
                if g < getattr(gp, "start", 0): continue
                if any(placed.get(id(a), g) >= g for a in getattr(gp, "after", ())): continue
                cst = sum(x.cost for x in gp)
                ismem = any(x.cls in VM + LG for x in gp)
                if used + cst > budget and used > 4: continue
                if ismem and si in alu_used: continue
                if ismem: mem.extend(gp)
                else: alu.extend(gp); alu_used.add(si)
                d = getattr(gp, "dead", None)
                assert d is None or g <= d, f"deadline missed: {gp} at {g} > {d}"
                placed[id(gp)] = g
                if len(st) > 2: nxt[si] = max(nxt[si], g) + 1.0 / st[2]
                used += cst; pos[si] += 1; progress = True
        out.extend(mem); out.extend(alu)
    rest = S()
    for si, st in enumerate(streams):
        for gp in st[1][pos[si]:]:
            d = getattr(gp, "dead", None)
            assert d is None or d >= len(mains), f"deadline missed (unplaced): {gp}"
            rest.extend(gp)
    return out, rest
```

```python
from asmgen import *
from layout import *
from gen_prep import srd, decode_ids
import struct, math

def f2u(x): return struct.unpack("<I", struct.pack("<f", x))[0]
WS = "s[4:7]"
SG, SJ, SW, SL, SC, STH, STB = 16, 17, 18, 19, 20, 21, 22
sCTR, sTGT, sFO, sFS, sFEXP, sWQ, sWG, sWO, sWD = 23, 24, 25, 26, 27, 28, 29, 30, 31
sXr, sSTr, sXw, sSTw, sKVw, sKVr, sOw, sOr, sHw, sHr, sKVinc, sFinc = 32, 33, 34, 35, 36, 37, 38, 39, 40, 41, 42, 43
sHM = 44
sT = 50
vL, vL1, vL2, vX16, vX8, vSTr, vSTw, vCS, vK, vV, vO8, vZ, vONE, vTS = 1, 2, 3, 4, 5, 6, 7, 8, 9, 10, 11, 12, 13, 14
RES = 16
SPIN = 1 << 16
M32 = "v_mfma_f32_32x32x16_bf16"
M16 = "v_mfma_f32_16x16x32_bf16"

def r(p, a, n): return f"{p}[{a}:{a+n-1}]"
def ldsa(addr):
    return (vL + addr // 65536, addr % 65536)

class G:
    def __init__(self, ts=False, stop=99, verbose=False):
        self.e = S(); self.ts_on = ts; self.stop = stop; self.nts = 0; self.lab = 0
    def label(self, p):
        self.lab += 1; return f"{p}{self.lab}"
    def ts(self, e=None):
        if not self.ts_on: return
        e = self.e if e is None else e
        k = self.nts; self.nts += 1
        e(f"s_memtime s[90:91]\ns_waitcnt lgkmcnt(0)\ns_lshl_b32 s92, s{SL}, 5\ns_add_u32 s92, s92, {k}\ns_nop 3\nv_writelane_b32 v{vTS}, s90, s92")
    def dma_groups(self, ssrc, src_off, lds_off, nkb, per_wave_kb, stmp, flags="", maybe=False, wave_sgpr=SW):
        gs = []
        for k in range(per_wave_kb):
            g = S()
            if k == 0:
                g(f"s_mul_i32 s{stmp+1}, s{wave_sgpr}, {per_wave_kb*KB}\ns_add_u32 s{stmp}, s{ssrc}, s{stmp+1}")
                if src_off: g(f"s_add_u32 s{stmp}, s{stmp}, {src_off}")
                g.insert(1, I(f"s_add_u32 m0, s{stmp+1}, {lds_off}"))
            elif k % 4 == 0:
                g(f"s_add_u32 m0, m0, 4096\ns_add_u32 s{stmp}, s{stmp}, 4096")
            g(f"buffer_load_dwordx4 v{vL}, {WS}, s{stmp} offen offset:{(k%4)*1024} {flags} lds", maybe)
            gs.append(Gp(g))
        return gs
    def load_groups(self, pre, reg0, n, ssrc, src_off, stmp, voff=vL, step=1024, flags=""):
        gs = []; per = 4096 // step
        for k in range(n):
            g = S()
            if k == 0: g(f"s_add_u32 s{stmp}, s{ssrc}, {src_off}")
            elif k % per == 0: g(f"s_add_u32 s{stmp}, s{stmp}, 4096")
            g(f"buffer_load_dwordx4 {r(pre, reg0+4*k, 4)}, v{voff}, {WS}, s{stmp} offen offset:{(k%per)*step} {flags}")
            gs.append(Gp(g))
        return gs
    def poll(self, e, soff, sexp):
        L = self.label("Lp"); D = self.label("Ld")
        e(f"""s_mov_b32 s{sT+8}, 0
              {L}:""")
        e(f"buffer_load_dword v15, v{vZ}, {WS}, s{soff} offen sc1", maybe=True)
        e(f"""s_waitcnt vmcnt(0)
              v_readfirstlane_b32 s{sT+9}, v15
              s_add_u32 s{sT+8}, s{sT+8}, 1
              s_cmp_ge_u32 s{sT+9}, s{sexp}
              s_cbranch_scc1 {D}
              s_cmp_lt_u32 s{sT+8}, {SPIN}
              s_cbranch_scc1 {L}
              {D}:""")
    def row_sync(self, other=None):
        e = self.e
        O = self.label("Lo"); J = self.label("Lj"); D = self.label("Le")
        e(f"s_waitcnt vmcnt(0) lgkmcnt(0)\ns_barrier")
        self.ts()
        e(f"""s_add_u32 s{sTGT}, s{sTGT}, 16
              s_cmp_eq_u32 s{SW}, 0
              s_cbranch_scc0 {O}
              s_mov_b64 exec, 1
              v_mov_b32 v15, 1""")
        e(f"buffer_atomic_add v15, v{vZ}, {WS}, s{sCTR} offen sc0 sc1", maybe=True)
        e(f"""s_waitcnt vmcnt(0)
              v_readfirstlane_b32 s{sT+9}, v15
              s_add_u32 s{sT+9}, s{sT+9}, 1
              s_cmp_ge_u32 s{sT+9}, s{sTGT}
              s_cbranch_scc1 {D}""")
        self.poll(e, sCTR, sTGT)
        e(f"{D}:\ns_mov_b64 exec, -1\ns_branch {J}\n{O}:")
        if other is not None:
            e(f"s_sub_u32 s{sT+10}, s{SW}, 1")
            for g in other: e.add(g)
        e(f"{J}:\ns_barrier")
        self.ts()
    def stats_loads(self, e, reg):
        return [e(f"buffer_load_dword v{reg+i}, v{vSTr}, {WS}, s{sSTr} offen offset:{128*i} sc1") for i in range(8)]
    def stats_calc(self, reg, vmean, vrs):
        x = S()
        for a, b in ((0, 1), (2, 3), (4, 5), (6, 7), (0, 2), (4, 6), (0, 4)): x(f"v_add_f32 v{reg+a}, v{reg+a}, v{reg+b}")
        x(f"""v_mul_f32 v{reg}, {f2u(1/640)}, v{reg}
              v_mov_b32 v{reg+1}, v{reg}
              v_permlane32_swap_b32 v{reg}, v{reg+1}
              v_fma_f32 v{reg+1}, -v{reg}, v{reg}, v{reg+1}
              v_max_f32 v{reg+1}, 0, v{reg+1}
              v_add_f32 v{reg+1}, {f2u(1e-5)}, v{reg+1}
              v_rsq_f32 v{vrs}, v{reg+1}
              v_sub_f32 v{vmean}, 0, v{reg}""")
        return [[i] for i in x]

    def prologue(self):
        e = self.e
        e("s_cmp_ge_u32 s2, 256\ns_cbranch_scc1 M_end")
        e("s_load_dwordx2 s[46:47], s[0:1], 0\ns_load_dwordx2 s[48:49], s[0:1], 56\ns_load_dwordx2 s[50:51], s[0:1], 72")
        decode_ids(e, SG, SJ, SW)
        e(f"""v_and_b32 v39, 127, v0
              v_lshrrev_b32 v38, 7, v0
              v_mov_b32 v37, v0
              v_and_b32 v0, 63, v0
              v_lshlrev_b32 v{vL}, 4, v0
              v_add_u32 v{vL1}, 0x10000, v{vL}
              v_add_u32 v{vL2}, 0x20000, v{vL}
              v_lshrrev_b32 v40, 4, v0
              v_and_b32 v41, 15, v0
              v_lshrrev_b32 v42, 5, v0
              v_and_b32 v43, 31, v0
              v_and_b32 v44, 1, v40
              v_lshlrev_b32 v45, 4, v41
              v_lshl_add_u32 v{vX16}, v40, 9, v45
              v_lshl_add_u32 v{vX8}, v42, 9, v45
              v_lshl_add_u32 v{vX8}, v44, 3, v{vX8}
              v_add_u32 v{vX8}, 4096, v{vX8}
              v_lshlrev_b32 v46, 2, v41
              v_lshl_add_u32 v{vSTw}, v42, 6, v46
              v_lshl_add_u32 v{vSTr}, v44, 10, v{vSTw}
              v_lshlrev_b32 v{vCS}, 4, v42
              v_add_u32 v{vCS}, {L_CS}, v{vCS}
              v_lshlrev_b32 v{vO8}, 4, v43
              v_lshl_add_u32 v{vO8}, v42, 3, v{vO8}
              v_mov_b32 v{vZ}, 0
              v_mov_b32 v{vONE}, 1
              v_mov_b32 v{vTS}, 0
              s_mov_b32 s{SL}, 0
              s_and_b32 s{SC}, s{SJ}, 7
              s_lshr_b32 s{STH}, s{SJ}, 3
              s_lshl_b32 s{STB}, s{SG}, 2
              s_add_u32 s{STB}, s{STB}, s{SW}
              s_mov_b32 s{sHM}, 0
              s_mov_b32 s{sHM+1}, -1
              s_mul_i32 s52, s{SW}, {KVB}
              s_add_u32 s52, s52, {L_KV}
              v_add_u32 v{vK}, s52, v{vL}""")
        e(f"""v_and_b32 v47, 3, v0
              v_and_b32 v48, 1, v47
              v_lshrrev_b32 v49, 1, v47
              v_mul_u32_u24 v50, {KVP[4]-KVP[3]}, v48
              v_lshl_add_u32 v50, v49, 3, v50
              v_add_u32 v50, {KVP[3]}, v50
              v_mul_u32_u24 v51, {KVP[2]+8-KVP[5]}, v49
              v_add_u32 v51, {KVP[5]}, v51
              v_cmp_eq_u32 s[54:55], 1, v44
              v_lshrrev_b32 v52, 2, v41
              v_lshl_add_u32 v52, v42, 2, v52
              v_cndmask_b32 v50, v50, v51, s[54:55]
              v_lshl_add_u32 v50, v52, 4, v50
              v_add_u32 v{vV}, s52, v50""")
        srd(e, 4, 50, 0x10000000); srd(e, 8, 46, 2621440); srd(e, 12, 48, 2621440)
        e(f"""s_lshl_b32 s52, s{SG}, 13
              s_add_u32 s{sCTR}, s52, {OFF_CTRL+128}
              s_mov_b32 s{sTGT}, 0
              s_lshl_b32 s53, s{SJ}, 9
              s_add_u32 s{sFO}, s52, s53
              s_add_u32 s{sFO}, s{sFO}, {OFF_CTRL}
              s_mul_i32 s{sWQ}, s{SJ}, {160*KB}
              s_add_u32 s{sWQ}, s{sWQ}, {OFF_WQ}
              s_mul_i32 s{sWG}, s{SJ}, {240*KB}
              s_add_u32 s{sWG}, s{sWG}, {OFF_WG}
              s_lshl_b32 s52, s{SC}, 2
              s_add_u32 s52, s52, s{SW}
              s_mul_i32 s{sWO}, s52, {25*KB}
              s_add_u32 s{sWO}, s{sWO}, {OFF_WO}
              s_mul_i32 s{sWD}, s52, {60*KB}
              s_add_u32 s{sWD}, s{sWD}, {OFF_WD}
              s_mul_i32 s52, s{STB}, 40960
              s_add_u32 s{sXr}, s52, {OFF_X}
              s_mul_i32 s53, s{SJ}, 2560
              s_add_u32 s{sOw}, s52, s53
              s_add_u32 s{sOw}, s{sOw}, {OFF_O}
              s_lshl_b32 s52, s{STB}, 11
              s_add_u32 s{sSTr}, s52, {OFF_ST}
              s_mul_i32 s52, s{STB}, 98304
              s_mul_i32 s53, s{SJ}, 6144
              s_add_u32 s{sHw}, s52, s53
              s_add_u32 s{sHw}, s{sHw}, {OFF_H}
              s_lshl_b32 s52, s{SG}, 1
              s_add_u32 s52, s52, s{STH}
              s_lshl_b32 s56, s52, 2
              s_add_u32 s56, s56, s{SW}
              s_lshl_b32 s52, s52, 1
              s_mul_i32 s53, s52, 40960
              s_mul_i32 s54, s{SW}, 10240
              s_add_u32 s{sOr}, s53, s54
              s_add_u32 s{sOr}, s{sOr}, {OFF_O}
              s_mul_i32 s53, s52, 98304
              s_mul_i32 s54, s{SW}, 24576
              s_add_u32 s{sHr}, s53, s54
              s_add_u32 s{sHr}, s{sHr}, {OFF_H}
              s_lshr_b32 s53, s56, 1
              s_mul_i32 s53, s53, 40960
              s_mul_i32 s54, s{SC}, 5120
              s_add_u32 s53, s53, s54
              s_and_b32 s54, s{SW}, 1
              s_lshl_b32 s54, s54, 8
              s_add_u32 s53, s53, s54
              s_add_u32 s{sXw}, s53, {OFF_X+XSZ}
              s_lshl_b32 s53, s56, 3
              s_add_u32 s53, s53, s{SC}
              s_lshl_b32 s53, s53, 7
              s_add_u32 s{sSTw}, s53, {OFF_ST+STSZ}
              s_lshl_b32 s52, s{SJ}, 6
              s_add_u32 s53, s52, s{STB}
              s_mul_i32 s{sKVw}, s53, 6144
              s_add_u32 s{sKVw}, s{sKVw}, {OFF_KV}
              s_add_u32 s53, s53, s{SW}
              s_mul_i32 s53, s53, 6144
              s_add_u32 s53, s53, {OFF_KV - 8*6144}
              s_lshr_b32 s54, s{SW}, 1
              s_sub_u32 s55, 2, s54
              s_lshl_b32 s55, s55, 13
              s_sub_u32 s55, s{sFO}, s55
              s_add_u32 s54, s54, s{SG}
              s_cmp_ge_u32 s54, 2
              s_cselect_b32 s{sKVr}, s53, {OFF_INV}
              s_cselect_b32 s{sFS}, s55, s{sFO}
              s_cselect_b32 s{sKVinc}, {KVSZ}, 0
              s_cselect_b32 s{sFinc}, 4, 0
              s_mov_b32 s{sFEXP}, s{sFinc}""")
        e(f"""s_mul_i32 s46, s56, {16*1280}
              s_mul_i32 s53, s{SC}, 160
              s_add_u32 s46, s46, s53
              v_mul_u32_u24 v53, 1280, v41
              v_lshl_add_u32 v54, v40, 3, v53
              v_lshl_add_u32 v53, v40, 4, v53""")
        e(f"""buffer_load_dwordx4 v[56:59], v53, s[8:11], s46 offen
              buffer_load_dwordx4 v[60:63], v53, s[8:11], s46 offen offset:64
              buffer_load_dwordx2 v[64:65], v54, s[8:11], s46 offen offset:128""")
        e(f"""v_lshlrev_b32 v66, 2, v39
              v_min_u32 v67, 191, v37
              v_lshlrev_b32 v67, 2, v67
              s_lshl_b32 s52, s{SJ}, 13
              s_add_u32 s52, s52, {OFF_CSQ}
              s_add_u32 s53, s52, 4096
              s_mul_i32 s54, s{SJ}, {16*768}
              s_add_u32 s54, s54, {OFF_CSG}""")
        for p in range(16): e(f"buffer_load_dword v{70+p}, v66, {WS}, s{52+p//8} offen offset:{(p%8)*512}")
        for p in range(16):
            if p and p % 4 == 0: e("s_add_u32 s54, s54, 3072")
            e(f"buffer_load_dword v{90+p}, v67, {WS}, s54 offen offset:{(p%4)*768}")
        for g in self.dma_groups(sWQ, 0, 0, 120, 30, sT + 2): e.add(g)
        for i in range(10):
            e(f"v_lshlrev_b32 v{RES+2*i}, 16, v{56+i}\nv_and_b32 v{RES+2*i+1}, 0xffff0000, v{56+i}")
        for b in (70, 90):
            for st in (8, 4, 2, 1):
                for i in range(st): e(f"v_add_f32 v{b+i}, v{b+i}, v{b+i+st}")
        e(f"""v_add_u32 v66, {L_CS}, v66
              v_add_u32 v67, {L_CS+512}, v67
              ds_write_b32 v66, v70
              ds_write_b32 v67, v90
              s_waitcnt lgkmcnt(0)""")

    def qkv(self):
        e = self.e
        ACC, WR_, TT, PK, QF = 40, 104, 152, 216, 240
        vRS, vNM, vQS, vNQ = 36, 38, 212, 214
        ND = 4
        self.ts()
        xl = self.load_groups("a", 0, 40, sXr, 0, sT, flags="sc1")
        for g in xl[:4]: e.add(g)
        self.stats_loads(e, PK)
        for g in xl[4:]: e.add(g)
        e(f"s_add_u32 s{sXr}, s{sXr}, {XSZ}\ns_add_u32 s{sSTr}, s{sSTr}, {STSZ}")
        e.add(WR("a[0:3]")); e("s_barrier")
        self.ts()
        def wfrag(ks, T): return WR_ + ((ks % ND) * 3 + T) * 4
        def rdA(ks, T):
            v, o = ldsa((ks * 3 + T) * 1024); return I(f"ds_read_b128 {r('v', wfrag(ks,T), 4)}, v{v} offset:{o}")
        for ks in range(ND - 1):
            for T in range(3): e.add(rdA(ks, T))
        mains = []
        for ks in range(40):
            for T in range(3):
                c = "0" if ks == 0 else r('v', ACC + 16 * T, 16)
                m = [I(f"{M32} {r('v', ACC+16*T, 16)}, {r('v', wfrag(ks,T), 4)}, {r('a', 4*ks, 4)}, {c}")]
                if T == 2 and ks + 1 < 40: m.append(WR(f"{r('v', wfrag(ks+1,0), 12)} {r('a', 4*ks+4, 4)}"))
                if T == 0 and ks == 14: m.append(I("s_barrier"))
                if ks + ND - 1 < 40: m.append(rdA(ks + ND - 1, T))
                mains.append(m)
        st = self.stats_calc(PK, vNM, vRS)
        x = S()
        x(f"""v_mul_f32 v{vNM}, v{vNM}, v{vRS}
              v_mul_f32 v{vQS}, {f2u(20**-0.5*math.log2(math.e))}, v{vRS}
              v_mul_f32 v{vNQ}, {f2u(20**-0.5*math.log2(math.e))}, v{vNM}""")
        st += [[i] for i in x]
        csr = [[I(f"ds_read_b128 {r('v', TT+4*Gq, 4)}, v{vCS} offset:{32*Gq}")] for Gq in range(15)]
        for Gq in range(15):
            for i in range(4): st.append([I(f"v_mul_f32 v{TT+4*Gq+i}, v{TT+4*Gq+i}, v{vNM if Gq < 10 else vNQ}")])
        st += [[I(f"v_mov_b32 v{PK+10}, 0x3f803f80")], [I(f"v_mov_b32 v{PK+11}, 0")], [I(f"v_mov_b32 v{PK+22}, 0")], [I(f"v_mov_b32 v{PK+23}, 0")]]
        dB = self.dma_groups(sWQ, 120 * KB, 0, 40, 10, sT + 2)
        o, rest = weave(mains, [(3, csr, 1), (20, st), (43, dB, 0.5)], 24)
        e.add(o); e.add(rest)
        e.add(W(dB[-1][-1])); e("s_barrier")
        self.ts()
        NB = 8
        def bfrag(ks): return WR_ + (ks % NB) * 4
        def rdB(ks): return I(f"ds_read_b128 {r('v', bfrag(ks), 4)}, v{vL} offset:{ks*1024}")
        for ks in range(NB - 1): e.add(rdB(ks))
        dest = {0: (3, 0), 1: (3, 2), 2: (4, 0), 3: (4, 2), 4: (5, 0), 5: (2, 0), 6: (0, 0), 7: (0, 2), 8: (1, 0), 9: (1, 2)}
        e(f"s_add_u32 s{sT}, s{sKVw}, 4096")
        stores = []
        for Gq in range(10):
            a = ACC + 4 * Gq; t = TT + 4 * Gq; p, d = dest[Gq]
            for k in (0, 2):
                e(f"v_pk_fma_f32 {r('v', a+k, 2)}, {r('v', a+k, 2)}, {r('v', vRS, 2)}, {r('v', t+k, 2)} op_sel_hi:[1,0,1]")
            for k in (0, 2):
                e(f"v_cvt_pk_bf16_f32 v{PK+4*p+d+k//2}, v{a+k}, v{a+k+1}")
            if d == 2 or Gq in (4, 5):
                so, io = (sKVw, KVG[p]) if KVG[p] < 4096 else (sT, KVG[p] - 4096)
                stores.append(e(f"buffer_store_dwordx4 {r('v', PK+4*p, 4)}, v{vL}, {WS}, s{so} offen offset:{io} sc1"))
        e(f"s_add_u32 s{sKVw}, s{sKVw}, {KVSZ}")
        mains = []
        for ks in range(40):
            c = "0" if ks == 0 else r('v', ACC + 48, 16)
            m = [I(f"{M32} {r('v', ACC+48, 16)}, {r('v', bfrag(ks), 4)}, {r('a', 4*ks, 4)}, {c}")]
            if ks % 2 == 1 and ks + 1 < 40: m.append(WR(f"{r('v', bfrag(ks+1), 4)} {r('v', bfrag(ks+2), 4)}"))
            if ks + NB - 1 < 40: m.append(rdB(ks + NB - 1))
            mains.append(m)
        lw = [[I(f"ds_write_b128 v{vK}, {r('v', PK+4*p, 4)} offset:{8*KVB+KVP[p]}")] for p in range(6)]
        q = S()
        for Gq in (10, 11):
            a = ACC + 4 * Gq
            for k in range(4): q(f"v_fma_f32 v{a+k}, v{a+k}, v{vQS}, v{TT+4*Gq+k}")
            for k in (0, 2): q(f"v_cvt_pk_bf16_f32 v{QF+2*(Gq-10)+k//2}, v{a+k}, v{a+k+1}")
        q(f"v_lshrrev_b32 v72, 5, v0\nv_lshlrev_b32 v72, 2, v72\nv_and_b32 v73, 31, v0\nv_sub_u32 v72, v73, v72\nv_mov_b32 v73, {f2u(-1e30)}")
        qg = [[i] for i in q]
        for rr in range(16):
            k = 8 * (rr >> 2) + (rr & 3); sp = 56 + 2 * (rr % 2)
            qg.append([I(f"v_cmp_le_i32 s[{sp}:{sp+1}], {k}, v72")])
            if rr > 0:
                sq = 56 + 2 * ((rr - 1) % 2)
                qg.append([I(f"v_cndmask_b32 v{40+rr-1}, 0, v73, s[{sq}:{sq+1}]")]); qg.append([I(f"v_cndmask_b32 v{56+rr-1}, v73, 0, s[{sq}:{sq+1}]")])
        qg.append([I(f"v_cndmask_b32 v55, 0, v73, s[58:59]")]); qg.append([I(f"v_cndmask_b32 v71, v73, 0, s[58:59]")])
        fl = S(); fl.add(W(stores[-1])); fl("s_mov_b64 exec, 1")
        fl(f"buffer_atomic_add v{vONE}, v{vZ}, {WS}, s{sFO} offen sc1"); fl("s_mov_b64 exec, -1")
        o, rest = weave(mains, [(0, lw, 1), (6, qg), (26, [fl])], 24)
        e.add(o); e.add(rest)
        self.ts()
        e("s_mov_b64 exec, 1"); self.poll(e, sFS, sFEXP); e("s_mov_b64 exec, -1")
        self.ts()
        e(f"s_mul_i32 s{sT+1}, s{SW}, {2*KVB}\ns_add_u32 s{sT+1}, s{sT+1}, {L_KV}\ns_mov_b32 s{sT}, s{sKVr}")
        last = None
        for b in range(2):
            e(f"s_mov_b32 m0, s{sT+1}")
            for k in range(3): last = e(f"buffer_load_dwordx4 v{vL}, {WS}, s{sT} offen offset:{1024*k} sc1 lds")
            e(f"s_add_u32 m0, s{sT+1}, 64")
            last = e(f"buffer_load_dwordx4 v{vL}, {WS}, s{sT} offen offset:3072 sc1 lds")
            e(f"s_add_u32 m0, s{sT+1}, {KVP[5]}\ns_add_u32 s{sT}, s{sT}, 4096")
            for k in range(2): last = e(f"buffer_load_dwordx4 v{vL}, {WS}, s{sT} offen offset:{1024*k} sc1 lds")
            e(f"s_add_u32 s{sT}, s{sT}, 2048\ns_add_u32 s{sT+1}, s{sT+1}, {KVB}")
        e(f"s_add_u32 s{sKVr}, s{sKVr}, s{sKVinc}\ns_add_u32 s{sFEXP}, s{sFEXP}, s{sFinc}")
        for Gq in (12, 13, 14):
            a = ACC + 4 * Gq
            for k in (0, 2):
                e(f"v_pk_fma_f32 {r('v', a+k, 2)}, {r('v', a+k, 2)}, {r('v', vQS, 2)}, {r('v', TT+4*Gq+k, 2)} op_sel_hi:[1,0,1]")
            for k in (0, 2):
                e(f"v_cvt_pk_bf16_f32 v{(QF+4+2*(Gq-12) if Gq < 14 else 74)+k//2}, v{a+k}, v{a+k+1}")
        hm = f"s[{sHM}:{sHM+1}]"
        e(f"""v_cndmask_b32 v{QF+8}, v74, 0, {hm}
              v_cndmask_b32 v{QF+9}, v75, 0, {hm}
              v_cndmask_b32 v{QF+12}, 0, v74, {hm}
              v_cndmask_b32 v{QF+13}, 0, v75, {hm}
              v_mov_b32 v{QF+10}, 0
              v_mov_b32 v{QF+14}, 0
              v_mov_b32 v76, {f2u(-1e30) >> 16}
              v_cndmask_b32 v{QF+11}, v76, 0, {hm}
              v_cndmask_b32 v{QF+15}, v76, 0, {hm}""")
        e.add(W(last, lw[-1][0])); e("s_barrier")
        self.ts()

    def att(self):
        e = self.e
        QF = 240; KF = 100; S2 = (104, 120); S1 = (136, 152); OA = (168, 184); P = 200; VA, VB = 72, 76; MX = 208
        hm = f"s[{sHM}:{sHM+1}]"
        def kread(b, p): return I(f"ds_read_b128 {r('a', KF+12*b+4*p, 4)}, v{vK} offset:{b*KVB+KVP[p]}")
        def smf(buf, b, hd, k):
            c0 = r('v', 40, 16) if b == 0 else r('v', 56, 16) if b == 8 else "0"
            if k == 0: return I(f"{M32} {r('v', buf, 16)}, {r('a', KF+12*b+4*hd, 4)}, {r('v', QF+4*hd, 4)}, {c0}")
            return I(f"{M32} {r('v', buf, 16)}, {r('a', KF+12*b+8, 4)}, {r('v', QF+8+4*hd, 4)}, {r('v', buf, 16)}")
        def pv(b, hd, p):
            c = "0" if (b == 0 and p == 0) else r('v', OA[hd], 16)
            return I(f"{M32} {r('v', OA[hd], 16)}, {r('v', (VA, VB)[p], 4)}, {r('v', P+4*p, 4)}, {c}")
        def vread(b, hd, p):
            v = (VA, VB)[p]
            return [I(f"ds_read_b64_tr_b16 {r('v', v+2*k, 2)}, v{vV} offset:{b*KVB+hd*512+256*p+128*k}") for k in range(2)]
        def mx(buf, b, hd, half):
            o = []
            for k in range(4):
                a = buf + 8 * half + 2 * k
                if b == 0 and half == 0 and k == 0: o.append(I(f"v_max_f32 v{MX+hd}, v{a}, v{a+1}"))
                else: o.append(I(f"v_max3_f32 v{MX+hd}, v{a}, v{a+1}, v{MX+hd}"))
            return o
        def ex(buf, q):
            o = [I(f"v_exp_f32 v{buf+4*q+k}, v{buf+4*q+k}") for k in range(4)]
            return o + [I(f"v_cvt_pk_bf16_f32 v{P+2*q+k}, v{buf+4*q+2*k}, v{buf+4*q+2*k+1}") for k in range(2)]
        def fin_max(hd):
            x = S()
            x(f"""v_mov_b32 v210, v{MX+hd}
                  v_permlane32_swap_b32 v210, v{MX+hd}
                  v_max_f32 v210, v210, v{MX+hd}
                  v_cvt_pk_bf16_f32 v211, -v210, -v210
                  v_and_b32 v211, 0xffff0000, v211
                  v_sub_f32 v211, -v210, v211
                  v_cvt_pk_bf16_f32 v211, -v210, v211
                  v_cndmask_b32 v{QF+10+4*hd}, v211, 0, {hm}""".replace("v_sub_f32 v211, -v210, v211", "v_fma_f32 v211, -1.0, v210, -v211"))
            return x
        pf = self.load_groups("a", 0, 25, sWO, 0, sT) + self.dma_groups(sWG, 0, 0, 80, 20, sT + 2)
        pfi = iter(pf)
        def nextpf(n=1):
            o = []
            for _ in range(n):
                g = next(pfi, None)
                if g: o += g
            return o
        for b in range(2):
            e.add(kread(b, 0)); e.add(kread(b, 2))
        for b in range(9):
            e.add(smf(S1[b % 2], b, 0, 0))
            if b + 2 < 9: e.add(kread(b + 2, 0)); e.add(kread(b + 2, 2))
            if b > 0: e.add(mx(S1[(b - 1) % 2], b - 1, 0, 0))
            e.add(smf(S1[b % 2], b, 0, 1)); e.add(kread(b, 1))
            if b > 0: e.add(mx(S1[(b - 1) % 2], b - 1, 0, 1))
        e.add(smf(S1[1], 0, 1, 0)); e.add(smf(S1[1], 0, 1, 1))
        e.add(mx(S1[0], 8, 0, 0)); e.add(mx(S1[0], 8, 0, 1))
        e.add(fin_max(0))
        self.ts()
        for hd in range(2):
            e.add(smf(S2[0], 0, hd, 0)); e.add(vread(0, hd, 0)); e.add(smf(S2[0], 0, hd, 1))
            if hd == 1:
                e.add(pv(8, 0, 1))
            for b in range(9):
                cur = S2[b % 2]; nxt = S2[(b + 1) % 2]
                p1 = S1[(b + 1) % 2]; p1n = S1[b % 2]
                if hd == 0:
                    if b + 1 < 9: e.add(smf(p1n, b + 1, 1, 0)); e.add(nextpf())
                    e.add(mx(p1, b, 1, 0))
                    if b + 1 < 9: e.add(smf(p1n, b + 1, 1, 1)); e.add(nextpf())
                    e.add(mx(p1, b, 1, 1))
                if b + 1 < 9: e.add(smf(nxt, b + 1, hd, 0)); e.add(nextpf())
                e.add(ex(cur, 0))
                if b + 1 < 9: e.add(smf(nxt, b + 1, hd, 1)); e.add(nextpf(hd))
                e.add(ex(cur, 1))
                if b > 0: e.add(pv(b - 1, hd, 1))
                e.add(vread(b, hd, 1))
                e.add(ex(cur, 2))
                e.add(pv(b, hd, 0))
                if b + 1 < 9: e.add(vread(b + 1, hd, 0))
                e.add(ex(cur, 3))
            if hd == 0: e.add(fin_max(1))
            self.ts()
        e.add(pv(8, 1, 1))
        e.add(nextpf(99))
        OP = 216
        for hd in range(2):
            a = OA[hd]
            e(f"v_rcp_f32 v210, v{a+12}")
            for k in range(0, 12, 2): e(f"v_pk_mul_f32 {r('v', a+k, 2)}, {r('v', a+k, 2)}, v[210:211] op_sel_hi:[1,0]")
            for k in range(0, 12, 2): e(f"v_cvt_pk_bf16_f32 v{OP+8*hd+k//2}, v{a+k}, v{a+k+1}")
            e(f"buffer_store_dwordx4 {r('v', OP+8*hd, 4)}, v{vL}, {WS}, s{sOw} offen offset:{1024*hd} sc1")
        e(f"v_cndmask_b32 v{OP+4}, v{OP+4}, v{OP+12}, {hm}\nv_cndmask_b32 v{OP+5}, v{OP+5}, v{OP+13}, {hm}")
        e(f"buffer_store_dwordx2 {r('v', OP+4, 2)}, v{vO8}, {WS}, s{sOw} offen offset:2048 sc1")
        e(f"s_add_u32 s{sOw}, s{sOw}, {XSZ}")
        self.ts()

    def proj(self, nks, ssrc, tbstride, inc, wreg, extra=None):
        e = self.e
        AC = (40, 60); INC = 80; XR = 100; nring = 4 if nks == 5 else 3; SCR = 100 * KB
        vW = (244, 245, 246); vR = 247
        ld = []
        for s in range(4):
            g0 = S()
            g0(f"""s_add_u32 s{sT+4}, s{SW}, {1+s}
                   s_and_b32 s{sT+4}, s{sT+4}, 3
                   s_lshr_b32 s{sT+5}, s{sT+4}, 1
                   s_mul_i32 s{sT+5}, s{sT+5}, {tbstride}
                   s_and_b32 s{sT+6}, s{sT+4}, 1
                   s_lshl_b32 s{sT+6}, s{sT+6}, 8
                   s_add_u32 s{sT+5}, s{sT+5}, s{sT+6}
                   s_add_u32 s{sT+5}, s{sT+5}, s{ssrc}""")
            gs = self.load_groups("v", XR + (s % nring) * nks * 4, nks, sT + 5, 0, sT, voff=vX16, step=2048, flags="sc1")
            gs[0] = Gp(g0 + gs[0])
            ld.append(gs)
        for s in range(nring):
            for g in ld[s]: e.add(g)
        for s in range(3):
            e(f"""s_add_u32 s{sT+4}, s{SW}, {1+s}
                  s_and_b32 s{sT+4}, s{sT+4}, 3
                  s_mul_i32 s{sT+4}, s{sT+4}, 5120
                  s_add_u32 s{sT+4}, s{sT+4}, {SCR + (s % 2) * 20480}
                  v_add_u32 v{vW[s]}, s{sT+4}, v{vL}""")
        e(f"s_mul_i32 s{sT+4}, s{SW}, 5120\ns_add_u32 s{sT+4}, s{sT+4}, {SCR}\nv_add_u32 v{vR}, s{sT+4}, v{vL}")
        self.ts()
        n = nks * 5
        mains = []; wrs = []; rds = []
        for s in range(4):
            for ks in range(nks):
                x = XR + ((s % nring) * nks + ks) * 4
                for i in range(5):
                    a = AC[s % 2] + 4 * i
                    m = [I(f"{M16} {r('v', a, 4)}, {r('a', wreg(ks*5+i), 4)}, {r('v', x, 4)}, {'0' if ks == 0 else r('v', a, 4)}")]
                    if i == 4 and not (s == 3 and ks == nks - 1):
                        s2, k2 = (s, ks + 1) if ks + 1 < nks else (s + 1, 0)
                        m.append(WR(r('v', XR + ((s2 % nring) * nks + k2) * 4, 4)))
                    mains.append(m)
            if s >= 1:
                t0 = s * n + 3
                wr = [Gp([I(f"ds_write_b128 v{vW[s-1]}, {r('v', AC[(s-1)%2]+4*i, 4)} offset:{1024*i}")], start=t0 + 3 * i, dead=(s + 1) * n - 4) for i in range(5)]
                rd = [Gp([I(f"ds_read_b128 {r('v', INC+4*i, 4)}, v{vR} offset:{((s-1)%2)*20480+1024*i}")], start=t0 + 17 + i) for i in range(5)]
                rd[0] = Gp([W(wr[-1][0]), I("s_barrier")] + rd[0], start=t0 + 17, after=[wr[-1]])
                ad = [Gp([I(f"v_add_f32 v{RES+i}, v{RES+i}, v{INC+i}")], start=t0 + 27) for i in range(20)]
                wrs += wr; rds += rd
                if s < 3 or nks > 5: rds += ad
        streams = [(0, wrs), (0, rds)]
        if nring < 4: streams.append((n, ld[3], 0.25))
        if extra: streams.append((2 * n + 10, extra, 0.2))
        o, rest = weave(mains, streams, 8)
        e.add(o); e.add(rest)
        e(f"s_add_u32 s{ssrc}, s{ssrc}, {inc}")
        self.ts()
        for i in range(0, 20, 2): e(f"v_pk_add_f32 {r('v', RES+i, 2)}, {r('v', RES+i, 2)}, {r('v', AC[1]+i, 2)}")
        if nks == 5:
            for i in range(0, 20, 2): e(f"v_pk_add_f32 {r('v', RES+i, 2)}, {r('v', RES+i, 2)}, {r('v', INC+i, 2)}")
        for i in range(10): e(f"v_cvt_pk_bf16_f32 v{40+i}, v{RES+2*i}, v{RES+2*i+1}")
    def proj_store(self):
        e = self.e
        e(f"""buffer_store_dwordx4 v[40:43], v{vX16}, {WS}, s{sXw} offen sc1
              buffer_store_dwordx4 v[44:47], v{vX16}, {WS}, s{sXw} offen offset:2048 sc1
              buffer_store_dwordx2 v[48:49], v{vX8}, {WS}, s{sXw} offen sc1""")
        e(f"v_pk_add_f32 v[52:53], {r('v', RES, 2)}, {r('v', RES+2, 2)}\nv_pk_mul_f32 v[54:55], {r('v', RES, 2)}, {r('v', RES, 2)}")
        for i in range(2, 20, 2):
            if i > 2: e(f"v_pk_add_f32 v[52:53], v[52:53], {r('v', RES+i, 2)}")
            e(f"v_pk_fma_f32 v[54:55], {r('v', RES+i, 2)}, {r('v', RES+i, 2)}, v[54:55]")
        e(f"""v_add_f32 v52, v52, v53
              v_add_f32 v54, v54, v55
              v_permlane32_swap_b32 v52, v54
              v_add_f32 v52, v52, v54
              v_mov_b32 v53, v52
              v_permlane16_swap_b32 v52, v53
              v_add_f32 v52, v52, v53
              s_mov_b32 exec_lo, 0xffff
              s_mov_b32 exec_hi, 0xffff
              buffer_store_dword v52, v{vSTw}, {WS}, s{sSTw} offen sc1
              s_mov_b64 exec, -1
              s_add_u32 s{sXw}, s{sXw}, {XSZ}
              s_add_u32 s{sSTw}, s{sSTw}, {STSZ}""")

    def gu(self):
        e = self.e
        ACC, WR_, CS0, TMP, HP, STT = 40, 136, 168, 200, 216, 232
        vRS, vNM, vC1, vC2, vI2 = 36, 38, 240, 242, 244
        ND = 4
        xl = self.load_groups("a", 0, 40, sXr, 0, sT, flags="sc1")
        for g in xl[:4]: e.add(g)
        self.stats_loads(e, STT)
        for g in xl[4:]: e.add(g)
        e(f"s_add_u32 s{sXr}, s{sXr}, {XSZ}\ns_add_u32 s{sSTr}, s{sSTr}, {STSZ}")
        e.add(WR("a[0:3]")); e("s_barrier")
        self.ts()
        def wfrag(K, T): return WR_ + ((K % ND) * 2 + T) * 4
        def rd(K, T):
            ch = K // 10
            v, o = ldsa((ch % 7) * 20480 + ((K % 10) * 2 + T) * 1024); return I(f"ds_read_b128 {r('v', wfrag(K,T), 4)}, v{v} offset:{o}")
        for K in range(ND - 1):
            for T in range(2): e.add(rd(K, T))
        dch = {c: self.dma_groups(sWG, c * 20480, (c % 7) * 20480, 20, 5, sT + 2) for c in range(7, 12)}
        mains = []; streams = []
        free_bar = {20: (7, 8), 40: (9, 10), 50: (11,)}
        vis_bar = {66: 8, 86: 10, 106: 11}
        for K in range(120):
            p, ks = divmod(K, 40)
            for T in range(2):
                a = ACC + 32 * p + 16 * T
                c = "0" if K == 0 else r('v', a, 16)
                m = [I(f"{M32} {r('v', a, 16)}, {r('v', wfrag(K,T), 4)}, {r('a', 4*ks, 4)}, {c}")]
                if T == 1 and K + 1 < 120:
                    m.append(WR(f"{r('v', wfrag(K+1,0), 8)}" + (f" {r('a', 4*ks+4, 4)}" if p == 0 and ks < 39 else "")))
                if T == 0 and K in free_bar:
                    m.append(I("s_barrier"))
                    for c in free_bar[K]:
                        for g_ in dch[c]: g_.start = 2 * K + 1
                if T == 0 and K in vis_bar:
                    m += [W(dch[vis_bar[K]][-1][-1]), I("s_barrier")]
                if K + ND - 1 < 120: m.append(rd(K + ND - 1, T))
                mains.append(m)
        c1 = 2 * math.sqrt(2 / math.pi) * math.log2(math.e); c2 = c1 * 0.044715
        st = self.stats_calc(STT, vNM, vRS)
        x = S()
        x(f"""v_mul_f32 v{vC1}, {f2u(-c1)}, v{vRS}
              v_mul_f32 v{vC2}, v{vRS}, v{vRS}
              v_mov_b32 v{vI2}, v{STT+1}
              v_mul_f32 v{vC2}, v{vC2}, v{vRS}
              v_mul_f32 v{vC2}, {f2u(-c2)}, v{vC2}""")
        st += [[i] for i in x]
        csr = [Gp([I(f"ds_read_b128 {r('v', (ACC+4*q if q >= 8 else CS0+4*q), 4)}, v{vCS} offset:{512+32*q}")]) for q in range(24)]
        for q in range(32, 96): st.append(Gp([I(f"v_mul_f32 v{ACC+q}, v{ACC+q}, v{vNM}")], after=[csr[-1]], dead=76))
        def epi(p, pk):
            x = S(); Gr = ACC + 32 * p; U = Gr + 16
            if p == 0:
                for i in range(32): x(f"v_fma_f32 v{Gr+i}, v{CS0+i}, v{vNM}, v{Gr+i}")
            for q in range(0, 16, 4):
                t = TMP
                if pk:
                    for k in (0, 2): x(f"v_pk_mul_f32 {r('v', t+k, 2)}, {r('v', Gr+q+k, 2)}, {r('v', Gr+q+k, 2)}")
                    for k in (0, 2): x(f"v_pk_fma_f32 {r('v', t+k, 2)}, {r('v', t+k, 2)}, {r('v', vC2, 2)}, {r('v', vC1, 2)} op_sel_hi:[1,0,0]")
                    for k in (0, 2): x(f"v_pk_mul_f32 {r('v', t+k, 2)}, {r('v', t+k, 2)}, {r('v', Gr+q+k, 2)}")
                else:
                    for k in range(4): x(f"v_mul_f32 v{t+k}, v{Gr+q+k}, v{Gr+q+k}")
                    for k in range(4): x(f"v_fma_f32 v{t+k}, v{t+k}, v{vC2}, v{vC1}")
                    for k in range(4): x(f"v_mul_f32 v{t+k}, v{t+k}, v{Gr+q+k}")
                for k in range(4): x(f"v_exp_f32 v{t+k}, v{t+k}")
                if pk:
                    for k in (0, 2): x(f"v_pk_mul_f32 {r('v', U+q+k, 2)}, {r('v', U+q+k, 2)}, {r('v', Gr+q+k, 2)}")
                    for k in (0, 2): x(f"v_pk_fma_f32 {r('v', t+k, 2)}, {r('v', t+k, 2)}, {r('v', vI2, 2)}, {r('v', vI2, 2)} op_sel_hi:[1,0,0]")
                else:
                    for k in range(4): x(f"v_mul_f32 v{U+q+k}, v{U+q+k}, v{Gr+q+k}")
                    for k in range(4): x(f"v_fma_f32 v{t+k}, v{t+k}, v{vI2}, v{vI2}")
                for k in range(4): x(f"v_rcp_f32 v{t+k}, v{t+k}")
                if pk:
                    for k in (0, 2): x(f"v_pk_mul_f32 {r('v', U+q+k, 2)}, {r('v', U+q+k, 2)}, {r('v', t+k, 2)}")
                else:
                    for k in range(4): x(f"v_mul_f32 v{U+q+k}, v{U+q+k}, v{t+k}")
                for k in (0, 2): x(f"v_cvt_pk_bf16_f32 v{HP+(q+k)//2}, v{U+q+k}, v{U+q+k+1}")
                if q % 8 == 4:
                    h = q // 8; off = p * 2048 + h * 1024
                    if off >= 4096 and h == 0: x(f"s_add_u32 s{sHw}, s{sHw}, 4096")
                    x(f"buffer_store_dwordx4 {r('v', HP+4*h, 4)}, v{vL}, {WS}, s{sHw} offen offset:{off%4096} sc1")
            return x
        wd1 = self.load_groups("a", 160, 24, sWD, 0, sT + 4)
        wd2 = self.load_groups("a", 0, 36, sWD, 24 * KB, sT + 4)
        for k, g_ in enumerate(wd2): g_.start = 162 + 2 * k
        streams = [(0, [g_ for c in range(7, 12) for g_ in dch[c]], 0.5), (112, wd1 + wd2, 0.5), (2, csr, 1), (14, st),
                   (84, grp(epi(0, False), dead=158) + grp(epi(1, False), start=164))]
        o, rest = weave(mains, streams, 24)
        e.add(o)
        self.ts()
        assert all(i.cls in ("vload", "salu") for i in rest), [i.text for i in rest]
        e.add(epi(2, True))
        e.add(rest)
        e(f"s_add_u32 s{sHw}, s{sHw}, {HSZ-4096}")

    def finish(self):
        e = self.e
        if self.ts_on:
            e(f"s_lshl_b32 s52, s2, 2\ns_add_u32 s52, s52, s{SW}\ns_lshl_b32 s52, s52, 8\ns_add_u32 s52, s52, {OFF_TS}\nv_lshlrev_b32 v15, 2, v0")
            e(f"buffer_store_dword v{vTS}, v15, {WS}, s52 offen")
        e("s_endpgm")

    def build(self):
        e = self.e
        self.prologue()
        def stop(k):
            if self.stop % 5 == k % 5 and self.stop < 10:
                L = self.label("Ls")
                e(f"s_cmp_eq_u32 s{SL}, {(self.stop-1)//5}\ns_cbranch_scc0 {L}"); self.finish(); e(f"{L}:")
        e("M_layer:")
        self.qkv(); stop(1)
        self.att(); stop(2)
        self.row_sync()
        self.proj(5, sOr, 40960, XSZ, lambda f: 4 * f); self.proj_store(); stop(3)
        self.row_sync(self.dma_groups(sWG, 80 * KB, 80 * KB, 60, 20, sT + 2, maybe=True, wave_sgpr=sT + 10))
        self.gu(); stop(4)
        self.row_sync()
        self.proj(12, sHr, 98304, HSZ, lambda f: 160 + 4 * f if f < 24 else 4 * (f - 24),
                  extra=self.dma_groups(sWQ, 0, 0, 36, 9, sT + 2))
        e(f"s_cmp_eq_u32 s{SL}, 1\ns_cbranch_scc1 M_final")
        self.proj_store(); stop(5)
        self.row_sync(self.dma_groups(sWQ, 36 * KB, 36 * KB, 84, 28, sT + 2, maybe=True, wave_sgpr=sT + 10))
        e(f"s_mov_b32 s{SL}, 1\ns_branch M_layer")
        e("M_final:")
        e(f"""v_lshrrev_b32 v52, 4, v0
              v_and_b32 v53, 15, v0
              v_mul_u32_u24 v53, 1280, v53
              v_lshl_add_u32 v54, v52, 3, v53
              v_lshl_add_u32 v53, v52, 4, v53
              buffer_store_dwordx4 v[40:43], v53, s[12:15], s46 offen
              buffer_store_dwordx4 v[44:47], v53, s[12:15], s46 offen offset:64
              buffer_store_dwordx2 v[48:49], v54, s[12:15], s46 offen offset:128""")
        self.ts()
        self.finish()
        e("M_end:\ns_endpgm")
        return e

def gen_main(**kw):
    return G(**kw).build()
```

```python
from asmgen import *
from layout import *

def srd(e, d, base, nbytes):
    e(f"s_mov_b32 s{d}, s{base}\ns_and_b32 s{d+1}, s{base+1}, 0xffff\ns_mov_b32 s{d+2}, {nbytes}\ns_mov_b32 s{d+3}, 0x20000")

def decode_ids(e, sg, sj, sw):
    e(f"""s_and_b32 s{sg}, s2, 7
          s_lshl_b32 s{sg}, s{sg}, 1
          s_lshr_b32 s{sj}, s2, 7
          s_add_u32 s{sg}, s{sg}, s{sj}
          s_lshr_b32 s{sj}, s2, 3
          s_and_b32 s{sj}, s{sj}, 15
          v_lshrrev_b32 v1, 6, v0
          v_readfirstlane_b32 s{sw}, v1""")

def gen_prep():
    e = S()
    SG, SJ, SW = 64, 65, 66
    X, WQ, WO, WG, WU, WD, WS = 24, 28, 32, 36, 40, 44, 48
    e("s_cmp_ge_u32 s2, 256\ns_cbranch_scc1 P_end")
    e("s_load_dwordx4 s[4:7], s[0:1], 0\ns_load_dwordx2 s[8:9], s[0:1], 16\ns_load_dwordx4 s[12:15], s[0:1], 32")
    e("s_load_dwordx2 s[16:17], s[0:1], 48\ns_load_dwordx2 s[18:19], s[0:1], 72")
    decode_ids(e, SG, SJ, SW)
    e("""v_and_b32 v0, 63, v0
         v_lshrrev_b32 v2, 4, v0
         v_and_b32 v3, 15, v0
         v_mov_b32 v10, 0x40000000
         v_mul_u32_u24 v4, 52, v3
         v_lshrrev_b32 v4, 8, v4
         v_mul_u32_u24 v5, 1200, v4
         v_lshl_add_u32 v5, v3, 4, v5
         v_mul_u32_u24 v6, 3840, v2
         v_add_u32 v5, v5, v6
         v_cmp_gt_u32 s[60:61], 15, v3
         v_mul_u32_u24 v6, 3072, v2
         v_lshl_add_u32 v6, v3, 4, v6
         v_cndmask_b32 v5, v10, v5, s[60:61]
         v_cmp_gt_u32 s[60:61], 12, v3
         v_mul_u32_u24 v7, 1280, v2
         v_lshl_add_u32 v7, v3, 4, v7
         v_cndmask_b32 v6, v10, v6, s[60:61]
         v_cmp_gt_u32 s[60:61], 10, v3
         v_and_b32 v8, 7, v0
         v_lshrrev_b32 v9, 3, v0
         v_cndmask_b32 v7, v10, v7, s[60:61]
         v_mul_u32_u24 v11, 1280, v8
         v_lshl_add_u32 v11, v9, 4, v11""")
    srd(e, X, 4, 2621440); srd(e, WQ, 6, 640 * 3840); srd(e, WO, 8, 640 * 1280)
    srd(e, WG, 12, 640 * 3072); srd(e, WU, 14, 640 * 3072); srd(e, WD, 16, 1536 * 1280); srd(e, WS, 18, 0x10000000)
    e(f"""s_and_b32 s67, s{SJ}, 7
          s_lshr_b32 s68, s{SJ}, 3
          s_mul_i32 s69, s{SG}, 40""")
    e(f"s_cmp_eq_u32 s{SW}, 0\ns_cbranch_scc0 P_nox")
    e(f"s_lshl_b32 s70, s{SG}, 4\ns_add_u32 s70, s70, s{SJ}\ns_mul_i32 s70, s70, {8*1280}")
    for n in range(10):
        e(f"buffer_load_dwordx4 v[{40+4*n}:{43+4*n}], v11, s[{X}:{X+3}], s70 offen offset:{128*n}", maybe=True)
    e("P_nox:")
    def dma(srdn, vo, ldsbase, nexpr, rowexpr, rowbytes, colreg, colmul):
        nexpr(); rowexpr()
        e(f"""s_mul_i32 s72, s72, {rowbytes}
              s_mul_i32 s73, s{colreg}, {colmul}
              s_add_u32 s72, s72, s73
              s_lshl_b32 s71, s71, 10
              s_add_u32 m0, s71, {ldsbase}
              buffer_load_dwordx4 v{vo}, s[{srdn}:{srdn+3}], s72 offen lds""")
    for (srdn, vo, base, rb, cm) in ((WQ, 5, 0, 3840, 80), (WG, 6, 10240, 3072, 192), (WU, 6, 20480, 3072, 192)):
        for i in range(3):
            dma(srdn, vo, base, lambda: e(f"s_add_u32 s71, s{SW}, {4*i}\ns_min_u32 s71, s71, 9"),
                lambda: e("s_lshl_b32 s72, s71, 2\ns_add_u32 s72, s72, s69"), rb, SJ, cm)
    e(f"s_lshl_b32 s74, s{SG}, 1\ns_add_u32 s74, s74, s68\ns_mul_i32 s75, s74, 48")
    for i in range(3):
        dma(WD, 7, 30720, lambda: e(f"s_add_u32 s71, s{SW}, {4*i}"),
            lambda: e("s_lshl_b32 s72, s71, 2\ns_add_u32 s72, s72, s75"), 1280, 67, 160)
    dma(WO, 7, 43008, lambda: e(f"s_mov_b32 s71, s{SW}"),
        lambda: e("s_mul_i32 s72, s68, 20\ns_add_u32 s72, s72, s69\ns_lshl_b32 s73, s71, 2\ns_add_u32 s72, s72, s73"), 1280, 67, 160)
    dma(WO, 7, 43008, lambda: e(f"s_and_b32 s73, s{SW}, 1\ns_add_u32 s71, s73, 4"),
        lambda: e("s_mul_i32 s72, s73, 20\ns_add_u32 s72, s72, s69\ns_add_u32 s72, s72, 16"), 1280, 67, 160)
    e(f"""v_mov_b32 v12, 0
          v_mov_b32 v13, 0
          v_mov_b32 v14, 0
          v_mov_b32 v15, 0
          v_lshlrev_b32 v16, 3, v0
          v_lshlrev_b32 v17, 4, v0
          s_cmp_eq_u32 s{SW}, 3
          s_cbranch_scc0 P_noctl
          s_lshl_b32 s70, s{SG}, 4
          s_add_u32 s70, s70, s{SJ}
          s_lshl_b32 s70, s70, 9""")
    e(f"buffer_store_dwordx2 v[12:13], v16, s[{WS}:{WS+3}], s70 offen", maybe=True)
    e(f"""s_cmp_lt_u32 s2, 12
          s_cbranch_scc0 P_noctl
          s_cmp_eq_u32 s2, 5
          s_cselect_b32 s71, 1, 0
          s_cmp_eq_u32 s2, 11
          s_cselect_b32 s71, 1, s71
          s_mul_i32 s72, s71, 0x3f803f80
          s_mul_i32 s73, s71, 0x3f80
          v_mov_b32 v14, s72
          v_mov_b32 v15, s73
          s_lshl_b32 s70, s2, 10
          s_add_u32 s70, s70, {OFF_INV}""")
    e(f"buffer_store_dwordx4 v[12:15], v17, s[{WS}:{WS+3}], s70 offen", maybe=True)
    e("P_noctl:")
    e("""v_lshrrev_b32 v18, 2, v3
         v_lshlrev_b32 v18, 8, v18
         v_and_b32 v19, 3, v0
         v_and_b32 v20, 31, v0
         v_lshlrev_b32 v20, 4, v20
         v_lshrrev_b32 v21, 5, v0
         v_mov_b32 v22, 0x3f803f80
         v_lshlrev_b32 v23, 4, v3
         v_lshlrev_b32 v24, 2, v0""")
    e("s_waitcnt vmcnt(0)\ns_barrier")
    e(f"s_mul_i32 s76, s{SG}, 5")
    def tr_units(va, nun, ldsoff, dreg):
        for u in range(nun):
            e(f"ds_read_b64_tr_b16 v[{dreg+4*u}:{dreg+4*u+1}], v{va} offset:{ldsoff+2048*u}")
            e(f"ds_read_b64_tr_b16 v[{dreg+4*u+2}:{dreg+4*u+3}], v{va} offset:{ldsoff+2048*u+1024}")
    def colsum_store(vbase, vstride, sbase, dreg, scs):
        e("v_mov_b32 v30, 0")
        for hs in range(5):
            e(f"""s_add_u32 s77, s76, {hs}
                  s_lshr_b32 s78, s77, 1
                  s_and_b32 s77, s77, 1
                  s_lshl_b32 s77, s77, 9
                  s_add_u32 s77, s77, s{sbase}
                  v_mad_u32_u24 v31, s78, v{vstride}, v{vbase}""")
            e(f"buffer_store_dwordx4 v[{dreg+4*hs}:{dreg+4*hs+3}], v31, s[{WS}:{WS+3}], s77 offen")
            for k in range(4): e(f"v_dot2c_f32_bf16 v30, v{dreg+4*hs+k}, v22")
        e(f"buffer_store_dword v30, v24, s[{WS}:{WS+3}], s{scs} offen")
    def gu_part(sp):
        e(f"""v_and_b32 v25, 1, v19
              v_lshrrev_b32 v26, 1, v19
              v_lshl_add_u32 v25, v25, 1, v26
              v_and_b32 v26, 1, v2
              v_lshl_add_u32 v25, v26, 2, v25
              v_lshl_add_u32 v25, v25, 3, v18
              v_mul_u32_u24 v26, 10240, v21
              s_lshl_b32 s79, s{sp}, 6
              v_add3_u32 v25, v25, v26, s79""")
        tr_units(25, 5, 10240, 80)
        e(f"""v_lshl_add_u32 v27, v21, 10, v20
              v_mov_b32 v28, 2048
              s_mul_i32 s80, s{SJ}, {240*KB}
              s_mul_i32 s81, s{sp}, {80*KB}
              s_add_u32 s80, s80, s81
              s_add_u32 s80, s80, {OFF_WG}
              s_lshl_b32 s81, s{SJ}, 4
              s_add_u32 s81, s81, s{SG}
              s_mul_i32 s81, s81, 768
              s_lshl_b32 s82, s{sp}, 8
              s_add_u32 s81, s81, s82
              s_add_u32 s81, s81, {OFF_CSG}""")
        colsum_store(27, 28, 80, 80, 81)
    def proj_part(ldsbase, nsg, slot_expr, sbase):
        e(f"""v_lshrrev_b32 v25, 1, v2
              v_lshlrev_b32 v25, 3, v25
              v_and_b32 v26, 1, v2
              v_add_u32 v25, v25, v26
              v_lshl_add_u32 v25, v19, 1, v25
              v_lshl_add_u32 v25, v25, 3, v18
              v_lshl_add_u32 v27, v2, 10, v23""")
        tr_units(25, nsg, ldsbase, 100)
        for sg in range(nsg):
            slot_expr(sg)
            e(f"""s_lshr_b32 s78, s77, 2
                  s_mul_i32 s78, s78, 5120
                  s_and_b32 s77, s77, 3
                  s_lshl_b32 s77, s77, 8
                  s_add_u32 s77, s77, s78
                  s_add_u32 s77, s77, s{sbase}""")
            e(f"buffer_store_dwordx4 v[{100+4*sg}:{103+4*sg}], v27, s[{WS}:{WS+3}], s77 offen")
            e(f"v_writelane_b32 v29, s77, {sg}")
        for o in range((nsg + 3) // 4):
            e(f"""v_add_u32 v25, {4*o}, v2
                  v_min_u32 v25, {nsg-1}, v25
                  v_lshlrev_b32 v26, 2, v25
                  ds_bpermute_b32 v28, v26, v29""".replace("ds_bpermute_b32", "ds_read_bperm"))
            e[-1].text = e[-1].text.replace("ds_read_bperm", "ds_bpermute_b32")
            e(f"""v_lshl_add_u32 v25, v25, 11, v18
                  v_lshl_add_u32 v25, v19, 3, v25""")
            tr_units(25, 1, ldsbase + 128, 32)
            e(f"v_add_u32 v28, v28, v23\nv_add_u32 v28, 4096, v28")
            e(f"buffer_store_dwordx4 v[32:35], v28, s[{WS}:{WS+3}], 0 offen")
    e(f"s_cmp_eq_u32 s{SW}, 0\ns_cbranch_scc1 P_w0")
    e(f"s_cmp_eq_u32 s{SW}, 3\ns_cbranch_scc1 P_w3")
    tab = [[0] * 4, [0] * 4]
    for tp in range(2):
        for G in range(4):
            T = 2 * tp + (G >> 1)
            for c in range(4):
                cp = 4 * (G & 1) + c
                tab[tp][G] |= qkv_src(4 * T + (cp >> 1), cp & 1) << (8 * c)
    e(f"s_cmp_eq_u32 s{SW}, 1")
    for G in range(4):
        e(f"s_mov_b32 s{84+G}, {tab[1][G]}\ns_cselect_b32 s{84+G}, {tab[0][G]}, s{84+G}")
    e("v_mov_b32 v25, s84")
    for G in range(1, 4):
        e(f"v_cmp_eq_u32 s[60:61], {G}, v2\nv_mov_b32 v26, s{84+G}\nv_cndmask_b32 v25, v25, v26, s[60:61]")
    e("""v_lshlrev_b32 v26, 3, v19
         v_lshrrev_b32 v25, v26, v25
         v_and_b32 v25, 0xff, v25
         v_add_u32 v25, v25, v18""")
    tr_units(25, 5, 0, 40)
    e(f"""s_sub_u32 s83, s{SW}, 1
          s_lshl_b32 s79, s83, 1
          v_add_u32 v26, s79, v21
          v_cmp_eq_u32 s[60:61], 3, v26
          v_lshlrev_b32 v27, 10, v26
          v_mov_b32 v28, {120*KB}
          v_cndmask_b32 v27, v27, v28, s[60:61]
          v_add_u32 v27, v27, v20
          v_mov_b32 v28, 3072
          v_mov_b32 v26, 1024
          v_cndmask_b32 v28, v28, v26, s[60:61]
          s_mul_i32 s80, s{SJ}, {160*KB}
          s_add_u32 s80, s80, {OFF_WQ}
          s_lshl_b32 s81, s{SJ}, 4
          s_add_u32 s81, s81, s{SG}
          s_lshl_b32 s81, s81, 9
          s_lshl_b32 s82, s83, 8
          s_add_u32 s81, s81, s82
          s_add_u32 s81, s81, {OFF_CSQ}""")
    colsum_store(27, 28, 80, 40, 81)
    gu_part(83)
    e("s_endpgm")
    e("P_w3:")
    e("s_mov_b32 s83, 2")
    gu_part(83)
    e(f"s_mul_i32 s88, s67, {240*KB}\ns_add_u32 s88, s88, {OFF_WD}\ns_mul_i32 s89, s74, 6")
    proj_part(30720, 6, lambda sg: e(f"s_add_u32 s77, s89, {sg}"), 88)
    e("s_endpgm")
    e("P_w0:")
    e(f"""s_lshl_b32 s70, s{SG}, 2
          s_lshr_b32 s71, s{SJ}, 2
          s_add_u32 s70, s70, s71
          s_mul_i32 s70, s70, 40960
          s_and_b32 s71, s{SJ}, 3
          s_lshl_b32 s71, s71, 7
          s_add_u32 s70, s70, s71
          s_add_u32 s70, s70, {OFF_X}
          v_lshlrev_b32 v25, 4, v8
          v_lshl_add_u32 v25, v9, 9, v25
          v_mov_b32 v30, 0
          v_mov_b32 v31, 0""")
    for n in range(10):
        e(f"buffer_store_dwordx4 v[{40+4*n}:{43+4*n}], v25, s[{WS}:{WS+3}], s70 offen")
        e("s_add_u32 s70, s70, 4096")
    for n in range(40):
        e(f"v_dot2c_f32_bf16 v30, v{40+n}, v22\nv_dot2c_f32_bf16 v31, v{40+n}, v{40+n}")
    e(f"""s_lshl_b32 s70, s{SG}, 3
          s_lshr_b32 s71, s{SJ}, 1
          s_add_u32 s70, s70, s71
          s_lshl_b32 s70, s70, 10
          s_and_b32 s71, s{SJ}, 1
          s_lshl_b32 s71, s71, 5
          s_add_u32 s70, s70, s71
          s_add_u32 s70, s70, {OFF_ST}
          v_lshlrev_b32 v25, 2, v8
          v_lshl_add_u32 v25, v9, 7, v25""")
    e(f"buffer_store_dword v30, v25, s[{WS}:{WS+3}], s70 offen")
    e(f"buffer_store_dword v31, v25, s[{WS}:{WS+3}], s70 offen offset:64")
    e(f"s_mul_i32 s88, s67, {100*KB}\ns_add_u32 s88, s88, {OFF_WO}\ns_lshl_b32 s89, s68, 1\ns_add_u32 s89, s89, s76")
    proj_part(43008, 3, lambda sg: e(f"s_add_u32 s77, s89, {sg}" if sg < 2 else "s_add_u32 s77, s76, 4"), 88)
    e("P_end:\ns_endpgm")
    return e
```

```python
KB = 1024
OFF_CTRL = 0
OFF_INV = 128 * KB
OFF_CSQ = 144 * KB
OFF_CSG = 272 * KB
OFF_ST = 464 * KB
OFF_TS = 976 * KB
OFF_WQ = 1536 * KB
OFF_WG = OFF_WQ + 2560 * KB
OFF_WO = OFF_WG + 3840 * KB
OFF_WD = OFF_WO + 800 * KB
OFF_X = OFF_WD + 1920 * KB
XSZ = 2560 * KB
OFF_O = OFF_X + 4 * XSZ
OFF_H = OFF_O + 2 * XSZ
HSZ = 6144 * KB
OFF_KV = OFF_H + 2 * HSZ
KVSZ = 6144 * KB
WS_END = OFF_KV + 2 * KVSZ
STSZ = 128 * KB

def qkv_src(Gq, h):
    if Gq <= 4: return 160 + 40 * h + 8 * Gq
    if Gq == 5: return 80 + 40 * h + 32
    if Gq <= 7: return 80 + 8 * (2 * h + Gq - 6)
    if Gq <= 9: return 120 + 8 * (2 * h + Gq - 8)
    if Gq <= 11: return 8 * (2 * h + Gq - 10)
    if Gq <= 13: return 40 + 8 * (2 * h + Gq - 12)
    if Gq == 14: return 40 * h + 32
    return 240
L_KV = 80 * KB
KVB = 6272
KVP = [0, 1024, 5248, 2048, 3136, 4224]
KVG = [0, 1024, 5120, 2048, 3072, 4096]
L_CS = 157 * KB + 512
LDS_BYTES = 160 * KB
assert L_KV + 12 * KVB <= L_CS and L_CS + 1280 <= LDS_BYTES
```

```python
import sys
sys.path.insert(0, "dev")
from asmgen import *
from layout import *
from gen_prep import gen_prep

HDR = open("interleave_layers__sliding_block__glu_gated_geglu__prompt.s.ref").read().split("; Override")[0]

def kernel_text(name, stream, nv, accum, ns=102, verbose=False):
    out, st = finalize(stream, verbose)
    body = "\n".join(x.text for x in out)
    txt = f".globl {name}\n.p2align 8\n.type {name},@function\n{name}:\n{body}\n"
    kd = f""".amdhsa_kernel {name}
  .amdhsa_next_free_vgpr {nv}
  .amdhsa_next_free_sgpr {ns}
  .amdhsa_accum_offset {accum}
  .amdhsa_group_segment_fixed_size 0
  .amdhsa_kernarg_size 80
  .amdhsa_user_sgpr_count 2
  .amdhsa_user_sgpr_kernarg_segment_ptr 1
  .amdhsa_system_sgpr_workgroup_id_x 1
  .amdhsa_float_denorm_mode_32 3
.end_amdhsa_kernel
"""
    print(f"{name}: {len(out)} instrs, {st}", file=sys.stderr)
    return txt, kd

def build(path, main=True, **kw):
    ks = [("prep_kernel", gen_prep(), 128, 128, 49152)]
    if main:
        from gen_main import gen_main
        ks.append(("main_kernel", gen_main(**kw), 512, 256, LDS_BYTES))
    s = HDR
    for k in ks: s += f"; @launch kernel={k[0]} grid=(256,1,1) block=(256,1,1) lds={k[4]}\n"
    s += '.amdgcn_target "amdgcn-amd-amdhsa--gfx950"\n.text\n'
    kds = ""
    for k in ks:
        t, kd = kernel_text(k[0], k[1], k[2], k[3], verbose=kw.get("verbose", False))
        s += t; kds += ".p2align 6\n" + kd
    s += '.section .rodata,"a"\n' + kds
    open(path, "w").write(s)
    print(f"{path}: {len(s)} bytes", file=sys.stderr)

if __name__ == "__main__":
    import argparse, json
    ap = argparse.ArgumentParser()
    ap.add_argument("out"); ap.add_argument("--nomain", action="store_true"); ap.add_argument("--kw", default="{}")
    a = ap.parse_args()
    build(a.out, not a.nomain, **json.loads(a.kw))
```
